```python
import torch

def _softmax(x, axis=-1):
    return torch.softmax(x, dim=axis)
def _gelu(x):
    return torch.nn.functional.gelu(x, approximate="tanh")
def _silu(x):
    return torch.nn.functional.silu(x)
def _sigmoid(x):
    return torch.sigmoid(x)
def _layernorm(x, axis=-1, eps=1e-5):
    m = x.mean(dim=axis, keepdim=True)
    v = x.var(dim=axis, keepdim=True, unbiased=False)
    return (x - m) / torch.sqrt(v + eps)
def _scatter_add(tgt, idx, src, axis=0):
    return tgt.clone().index_add_(axis, idx, src)
def _segment_sum(src, seg, n):
    out = torch.zeros((n,) + src.shape[1:], dtype=src.dtype)
    return out.index_add_(0, seg, src)
def _pad(x, pw):
    flat = tuple(v for pair in reversed(pw) for v in pair)
    return torch.nn.functional.pad(x, flat)

kernel_name = 'parallel_sum__softmax_full_mha__glu_gated_reglu__prompt'

def setup_inputs():

    _w = (lambda a: (lambda t: t.to(torch.bfloat16) if t.is_floating_point() else t)(torch.as_tensor(a)))
    def _A_setup():
        B, S, D = 1, 2048, 512
        return {
            "x": _w((lambda *s: torch.randn(*s, dtype=torch.bfloat16) * 0.05)(B, S, D)),
            "wqkv": _w((lambda *s: torch.randn(*s, dtype=torch.bfloat16) * 0.05)(D, 3 * D)),
            "wo": _w((lambda *s: torch.randn(*s, dtype=torch.bfloat16) * 0.05)(D, D)),
        }
    _A_in = _A_setup()

    def _B_setup():
        B, S, D, F = 1, 2048, 512, 1376
        return {
            "x": _w((lambda *s: torch.randn(*s, dtype=torch.bfloat16) * 0.05)(B, S, D)),
            "W_gate": _w((lambda *s: torch.randn(*s, dtype=torch.bfloat16) * 0.4)(D, F) * (2.0 / D) ** 0.5),
            "W_up": _w((lambda *s: torch.randn(*s, dtype=torch.bfloat16) * 0.4)(D, F) * (2.0 / D) ** 0.5),
            "W_down": _w((lambda *s: torch.randn(*s, dtype=torch.bfloat16) * 0.4)(F, D) * (1.0 / F) ** 0.5),
        }
    _B_in = _B_setup()

    return {
        "A_x": _A_in["x"],
        "A_wqkv": _A_in["wqkv"],
        "A_wo": _A_in["wo"],
        "B_x": _B_in["x"],
        "B_W_gate": _B_in["W_gate"],
        "B_W_up": _B_in["W_up"],
        "B_W_down": _B_in["W_down"],
    }

def reference(A_x, A_wqkv, A_wo, B_x, B_W_gate, B_W_up, B_W_down):
    def _A_ref(x, wqkv, wo):
        B, S, D = x.shape
        H = 32; Dh = D // H
        qkv = (lambda x, *d: x.permute(*d))((x @ wqkv).reshape(B, S, 3, H, Dh), 2, 0, 3, 1, 4)
        q, k, v = qkv[0], qkv[1], qkv[2]
        scale = Dh ** -0.5
        scores = torch.einsum("bhqd,bhkd->bhqk", q, k) * scale
        p = _softmax(scores, axis=-1)
        o = torch.einsum("bhqk,bhkd->bhqd", p, v)
        return (lambda x, *d: x.permute(*d))(o, 0, 2, 1, 3).reshape(B, S, D) @ wo

    def _B_ref(x, W_gate, W_up, W_down):
        gate = torch.einsum("bsd,df->bsf", x, W_gate)
        up = torch.einsum("bsd,df->bsf", x, W_up)
        gate = gate * (lambda x, dt: x.to(dt))(gate > 0, gate.dtype)
        h = gate * up
        return torch.einsum("bsf,fd->bsd", h, W_down)

    x = A_x
    xn = _layernorm(x, axis=-1)
    return x + _A_ref(xn, A_wqkv, A_wo) + _B_ref(xn, B_W_gate, B_W_up, B_W_down)
```

```python
import re

TRANS = ("v_exp_", "v_log_", "v_rcp_", "v_rsq_", "v_sqrt_", "v_sin_", "v_cos_")


def regs_of(tok):
    tok = tok.strip()
    if tok.startswith("-"):
        tok = tok[1:]
    tok = tok.strip("|")
    m = re.fullmatch(r"([vs])\[(\d+):(\d+)\]", tok)
    if m:
        return {(m.group(1), i) for i in range(int(m.group(2)), int(m.group(3)) + 1)}
    m = re.fullmatch(r"([vs])(\d+)", tok)
    if m:
        return {(m.group(1), int(m.group(2)))}
    if tok == "vcc":
        return {("s", 106), ("s", 107)}
    if tok == "m0":
        return {("s", 124)}
    if tok == "exec":
        return {("s", 126), ("s", 127)}
    return set()


class Ins:
    def __init__(self, text):
        self.text = text
        t = text.split(";")[0].strip()
        self.label = t.endswith(":") or t.startswith(".") or not t
        self.op = ""
        self.w = set()
        self.r = set()
        self.kind = "other"
        self.states = 0 if self.label else 1
        self.srcc = set()
        self.ab = set()
        self.sdata = set()
        if self.label:
            return
        p = t.split(None, 1)
        self.op = op = p[0]
        rest = p[1] if len(p) > 1 else ""
        ops = [o.strip() for o in rest.split(",")] if rest else []
        if ops:
            last = ops[-1].split()
            ops[-1] = last[0] if last else ""
        R = [regs_of(o) for o in ops]
        allr = lambda k: set().union(*R[k:]) if len(R) > k else set()
        if op == "s_nop":
            self.states = int(ops[0]) + 1
        elif op.startswith("v_mfma"):
            self.kind = "mfma"
            self.w = R[0]
            self.ab = R[1] | R[2]
            self.srcc = R[3]
            self.r = self.ab | self.srcc
        elif op.startswith("v_smfmac"):
            self.kind = "mfma"
            self.w = R[0]
            self.ab = R[1] | R[2] | R[3]
            self.srcc = R[0]
            self.r = self.ab | self.srcc
        elif op.startswith("v_"):
            self.kind = "valu"
            self.w = set(R[0])
            self.r = allr(1)
            if op.startswith("v_permlane") and "swap" in op:
                self.w = R[0] | R[1]
                self.r = R[0] | R[1]
            if op.startswith(("v_fmac", "v_dot2c", "v_mac")):
                self.r |= R[0]
            if op.startswith("v_cndmask") and len(ops) == 3:
                self.r |= regs_of("vcc")
        elif op.startswith("buffer_load") or op.startswith("global_load"):
            self.kind = "vmem"
            if re.search(r"\blds\b", rest):
                self.r = allr(0) | regs_of("m0")
                self.dma = True
            else:
                self.w = R[0]
                self.r = allr(1)
        elif op.startswith("buffer_store") or op.startswith("buffer_atomic"):
            self.kind = "vmem"
            self.r = allr(0)
            if "x4" in op or "x3" in op:
                self.sdata = R[0]
        elif op.startswith("ds_read"):
            self.kind = "ds"
            self.w = R[0]
            self.r = allr(1)
        elif op.startswith("ds_"):
            self.kind = "ds"
            self.r = allr(0)
        elif op.startswith("s_"):
            self.kind = "salu"
            if op.startswith(("s_cmp", "s_cbranch", "s_branch", "s_waitcnt", "s_barrier", "s_endpgm", "s_setprio", "s_sleep", "s_bitcmp")):
                self.r = allr(0)
            else:
                self.w = set(R[0]) if R else set()
                self.r = allr(1)


def need(a, b):
    n = 0
    vw = {x for x in a.w if x[0] == "v"}
    sw = {x for x in a.w if x[0] == "s"}
    if a.kind == "valu":
        dot = a.op.startswith("v_dot")
        if vw & b.r and b.kind == "mfma":
            n = max(n, 3 if dot else 2)
        if vw & b.r and b.op.startswith("v_permlane"):
            n = max(n, 2)
        if vw & b.r and "dpp" in b.text:
            n = max(n, 2)
        if vw & b.r and b.op.startswith(("v_readlane", "v_readfirstlane")):
            n = max(n, 1)
        if a.op.startswith(TRANS) and vw & b.r and b.kind == "valu" and not b.op.startswith(TRANS):
            n = max(n, 1)
        if dot and vw & (b.r | b.w) and b.kind != "salu":
            same = b.op == a.op and not (vw & (b.r - b.w))
            if not same:
                n = max(n, 3)
        if sw & b.r and b.kind == "vmem":
            n = max(n, 5)
        if sw & b.r and b.kind == "valu":
            n = max(n, 4 if b.op.startswith(("v_readlane", "v_writelane")) else 2)
    if a.kind == "mfma":
        small = "16x16" in a.op
        if b.kind == "mfma":
            if vw & b.ab:
                n = max(n, 8 if small else 12)
            if vw & b.srcc and vw != b.srcc:
                n = max(n, 6 if small else 10)
        elif b.kind in ("valu", "vmem", "ds") and vw & (b.r | b.w):
            n = max(n, 8 if small else 12)
        if b.kind == "valu" and a.srcc & b.w:
            n = max(n, 3 if small else 7)
    if a.sdata and a.sdata & b.w:
        n = max(n, 2)
    if a.kind == "salu" and ("s", 124) in sw and getattr(b, "dma", False):
        n = max(n, 1)
    return n


def pad_hazards(lines, verbose=False):
    out = []
    hist = []
    npad = 0
    for t in lines:
        b = Ins(t)
        if not b.label:
            dist = 0
            short = 0
            for a in reversed(hist):
                k = need(a, b)
                if k > dist:
                    short = max(short, k - dist)
                dist += a.states
                if dist >= 20:
                    break
            if short:
                nop = Ins(f"s_nop {short-1}")
                out.append(nop.text)
                hist.append(nop)
                npad += 1
                if verbose:
                    print(f"pad {short} before: {t}")
            hist.append(b)
            if len(hist) > 40:
                hist = hist[-40:]
        out.append(t)
    return out, npad


def check_loop(body):
    once, n1 = pad_hazards(body)
    twice, n2 = pad_hazards(once + once, verbose=True)
    return n2


class Asm:
    def __init__(self):
        self.L = []

    def __call__(self, s):
        if isinstance(s, (list, tuple)):
            for x in s:
                self(x)
            return
        for ln in s.split("\n"):
            ln = ln.strip()
            if ln:
                self.L.append(ln)


def vr(a, n=4):
    return f"v[{a}:{a+n-1}]"


def sr(a, n=4):
    return f"s[{a}:{a+n-1}]"
```

```python
import sys, struct, math
from asmlib import Asm, pad_hazards, check_loop, vr, sr

NAME = "parallel_sum__softmax_full_mha__glu_gated_reglu__prompt"

QKV, HF, WF, OF, TSB, WS_SIZE = 0, 0x600000, 0xB60000, 0xD40000, 0xF40000, 0x1000000
HEAD_STRIDE = 64 * 3072
import os
KVP = int(os.environ.get("KVP", 2064))
LDS_BYTES = 163840

sX, sWQ, sWG, sWU, sWR, sOUT, sDBG, sWS = 24, 28, 32, 36, 40, 44, 48, 52
sW, sXCD, sI, sTB, sCG, sROT = 56, 57, 58, 59, 60, 61
sHEAD, sQB, sTG, sNB = 6, 7, 8, 9
sTS0 = 76
SPIN = 1 << 18


def f32(x):
    return "0x%08x" % struct.unpack("<I", struct.pack("<f", x))[0]


class Gen:
    def __init__(self, **opt):
        self.o = dict(mode="two", ts=False, rot=True, force_fb=False)
        self.o.update(opt)
        self.a = Asm()
        self.fused = self.o["mode"] == "one"

    def ts(self, k):
        return [f"s_memtime s[{sTS0+2*k}:{sTS0+2*k+1}]"] if self.o["ts"] else []

    def ts_dump(self, slot):
        if not self.o["ts"]:
            return
        a = self.a
        a("s_waitcnt lgkmcnt(0)")
        a(f"s_lshl_b32 s62, s2, 3\ns_add_u32 s62, s62, s{sW}\ns_lshl_b32 s62, s62, 7\ns_add_u32 s62, s62, {TSB + slot * 64}")
        a("v_mov_b32 v2, 0")
        for k in range(12):
            a(f"v_mov_b32 v3, s{sTS0+2*k}")
            a(f"buffer_store_dword v3, v2, {sr(sWS)}, s62 offen offset:{4*k}")
        a("s_waitcnt vmcnt(0)")

    def prologue(self, end):
        a = self.a
        a(f"""
s_cmp_ge_u32 s2, 0x100
s_cbranch_scc1 {end}
s_load_dwordx2 s[{sX}:{sX+1}], s[0:1], 0
s_load_dwordx2 s[{sWQ}:{sWQ+1}], s[0:1], 8
s_load_dwordx2 s[{sWS}:{sWS+1}], s[0:1], 72
s_load_dwordx2 s[{sWG}:{sWG+1}], s[0:1], 32
s_load_dwordx2 s[{sWU}:{sWU+1}], s[0:1], 40
s_load_dwordx2 s[{sWR}:{sWR+1}], s[0:1], 16
s_load_dwordx2 s[4:5], s[0:1], 48
s_load_dwordx2 s[{sOUT}:{sOUT+1}], s[0:1], 56
s_load_dwordx2 s[{sDBG}:{sDBG+1}], s[0:1], 64
""")
        if self.o["ts"]:
            for k in range(12):
                a(f"s_mov_b32 s{sTS0+2*k}, 0")
        a(self.ts(0))
        a(f"""
v_lshrrev_b32 v1, 6, v0
v_and_b32 v0, 63, v0
s_and_b32 s{sXCD}, s2, 7
v_readfirstlane_b32 s{sW}, v1
s_lshr_b32 s{sI}, s2, 3
v_lshlrev_b32 v1, 4, v0
s_and_b32 s62, s{sXCD}, 3
s_and_b32 s{sNB}, s{sI}, 3
s_lshl2_add_u32 s{sTB}, s62, s{sNB}
s_lshr_b32 s62, s{sXCD}, 2
s_lshr_b32 s{sQB}, s{sI}, 2
s_lshl3_add_u32 s{sCG}, s62, s{sQB}
s_lshl1_add_u32 s{sROT}, s{sNB}, s{sQB}
s_and_b32 s{sROT}, s{sROT}, {7 if self.o['rot'] else 0}
s_lshl2_add_u32 s{sHEAD}, s{sXCD}, s{sNB}
s_lshl3_add_u32 s{sTG}, s{sXCD}, s{sQB}
""")
        for s, n in ((sX, 2097152), (sWQ, 1572864), (sWG, 1409024), (sWU, 1409024), (sWR, 524288),
                     (sOUT, 2097152), (sDBG, 256), (sWS, WS_SIZE)):
            a(f"s_mov_b32 s{s+2}, {n}\ns_mov_b32 s{s+3}, 0x00020000")

    def p1_compute(self):
        a = self.a
        X0 = 128
        a(f"""
s_lshl2_add_u32 s63, s{sTB}, s{sW}
s_lshl_b32 s62, s63, 15
v_lshrrev_b32 v2, 3, v0
v_lshlrev_b32 v2, 10, v2
v_add_u32 v2, s62, v2
v_lshrrev_b32 v3, 4, v0
v_and_b32 v4, 7, v0
v_xor_b32 v5, v4, v3
v_xor_b32 v6, 4, v5
v_lshl_add_u32 v32, v5, 4, v2
v_lshl_add_u32 v33, v6, 4, v2
v_add_u32 v33, 7168, v33
v_add_u32 v34, 14336, v32
v_add_u32 v35, 14336, v33
s_lshl_b32 s64, s{sW}, 12
s_add_u32 s64, s64, 32768
s_lshl_b32 s65, s{sROT}, 7
s_mov_b32 m0, s64
s_waitcnt lgkmcnt(0)
""")

        def xdma(j):
            L = []
            for i in range(4):
                L.append(f"buffer_load_dwordx4 v{32+i}, {sr(sX)}, s65 offen offset:{1024*i} lds")
            L += ["s_add_u32 m0, m0, 16384", "s_add_u32 s65, s65, 128", "s_and_b32 s65, s65, 0x3ff"]
            return L

        for j in range(4):
            a(xdma(j))
        a(f"""
v_and_b32 v10, 31, v0
v_lshrrev_b32 v11, 5, v0
v_bfe_u32 v4, v0, 1, 3
v_xor_b32 v4, v4, v11
v_lshlrev_b32 v4, 4, v4
v_lshl_add_u32 v4, v10, 7, v4
v_add_u32 v36, s64, v4
v_xor_b32 v37, 32, v36
v_xor_b32 v38, 64, v36
v_xor_b32 v39, 0x60, v36
v_mov_b32 v40, 0
v_mov_b32 v41, 0
v_mov_b32 v42, 0
v_mov_b32 v43, 0
s_mov_b32 s66, 0x3f803f80
s_mov_b32 s67, 0xffff0000
v_bfe_u32 v12, v0, 2, 2
v_lshl_add_u32 v13, v11, 3, v12
v_bfe_u32 v14, v0, 4, 1
v_bfe_u32 v15, v0, 1, 1
v_lshl_add_u32 v2, v14, 1, v15
v_lshrrev_b32 v3, 1, v12
v_lshlrev_b32 v3, 2, v3
v_xor_b32 v2, v2, v3
v_lshlrev_b32 v2, 4, v2
v_and_b32 v3, 1, v0
v_lshl_add_u32 v2, v3, 3, v2
v_lshl_add_u32 v2, v13, 7, v2
v_and_b32 v4, 3, v0
v_lshlrev_b32 v4, 3, v4
v_lshl_add_u32 v4, v14, 5, v4
v_lshl_add_u32 v4, v13, 6, v4
v_add_u32 v4, 2048, v4
v_mul_u32_u24 v5, 192, v13
v_lshl_add_u32 v5, v3, 3, v5
v_lshl_add_u32 v5, v15, 4, v5
v_mul_u32_u24 v6, 3072, v14
v_add_u32 v5, v5, v6
v_add_u32 v5, 114688, v5
v_lshlrev_b32 v7, 5, v14
v_sub_u32 v6, v5, v7
v_add_u32 v6, 32, v6
v_add_u32 v5, v5, v7
v_xor_b32 v3, 64, v2
v_and_b32 v9, 15, v0
v_lshl_add_u32 v9, v11, 4, v9
v_lshlrev_b32 v9, 4, v9
v_mul_u32_u24 v7, 3, v14
v_lshl_add_u32 v9, v7, 16, v9
v_add_u32 v9, 1024, v9
s_and_b32 s62, s{sCG}, 7
s_lshl_b32 s62, s62, 8
s_add_u32 s62, s62, s63
s_mul_i32 s68, s62, 3072
s_cmp_lt_u32 s{sCG}, 8
s_cselect_b32 s62, 2048, 0
s_cselect_b32 s72, {f32(0.25 * math.log2(math.e))}, 1.0
s_add_u32 s68, s68, s62
s_add_u32 s69, s68, {HEAD_STRIDE}
s_add_u32 s70, s69, {HEAD_STRIDE}
s_add_u32 s71, s70, {HEAD_STRIDE}
s_lshl_b32 s62, s{sCG}, 7
s_add_u32 s62, s62, s63
s_mul_i32 s73, s62, 3072
s_mul_i32 s62, s{sCG}, 6
s_min_u32 s62, s62, 80
s_mul_i32 s74, s63, 86
s_add_u32 s74, s74, s62
s_lshl_b32 s74, s74, 10
s_add_u32 s74, s74, {HF}
s_add_u32 s75, s74, 4096
""")

        def dots(j):
            L = []
            for r in range(16):
                x = X0 + 16 * j + r
                L.append(f"v_dot2c_f32_bf16 v{40 + (r & 1)}, s66, v{x}")
                L.append(f"v_dot2c_f32_bf16 v{42 + (r & 1)}, v{x}, v{x}")
            return L

        mf = []
        ACC1 = [80, 96, 112]
        for kk in range(32):
            for t in range(3):
                pre = []
                if t == 0 and kk % 4 == 0 and kk > 0:
                    pre.append("s_barrier")
                if t == 0 and kk == 16:
                    pre += [f"v_add_u32 v{r}, 49152, v{r}" for r in (2, 3, 4)]
                off = (kk % 16) * 3072
                rd = 512 if t < 2 else 256
                mf.append(dict(acc=ACC1[t], kk=kk, swap=(t == 2), first=(kk == 0), areg=2 + t, off=off, rd=rd, pre=pre))
        ubase = [0, 24576, 0, 24576, 0, 24576, 0, 24576]
        ushift = {2: -114688, 4: 49152, 6: 65536}
        for u in range(8):
            if u == 0:
                order = [(k, t) for k in range(4) for t in range(3)] + [(k, t) for k in range(4) for t in range(3, 6)]
            elif u == 7:
                order = [(k, t) for t in range(6) for k in range(4)]
            else:
                order = [(k, t) for k in range(4) for t in range(6)]
            for n, (k, t) in enumerate(order):
                pre = []
                if n == 0:
                    if self.fused and u == self.o.get("f1_unit", 5):
                        pre.append("s_waitcnt vmcnt(0)")
                    pre.append("s_barrier")
                    if u in ushift:
                        d = ushift[u]
                        op = "v_add_u32" if d > 0 else "v_subrev_u32"
                        pre += [f"{op} v{r}, {abs(d)}, v{r}" for r in (5, 6)]
                off = ubase[u] + k * 6144 + (t >> 1) * 64
                mf.append(dict(acc=32 + 16 * t, kk=4 * u + k, swap=False, first=(u == 0 and k == 0), areg=5 + (t & 1), off=off, rd=768, pre=pre))
        N = len(mf)

        def reads(m):
            d = mf[m]
            s = 16 + 4 * (m % 4)
            return d["pre"] + [f"ds_read_b64_tr_b16 v[{s}:{s+1}], v{d['areg']} offset:{d['off']}",
                               f"ds_read_b64_tr_b16 v[{s+2}:{s+3}], v{d['areg']} offset:{d['off'] + d['rd']}"]

        def norm(kk):
            L = []
            for p in range(2):
                x0, x1 = X0 + 4 * kk + 2 * p, X0 + 4 * kk + 2 * p + 1
                L += [f"v_lshlrev_b32 v10, 16, v{x0}", f"v_and_b32 v11, s67, v{x0}",
                      f"v_lshlrev_b32 v12, 16, v{x1}", f"v_and_b32 v13, s67, v{x1}",
                      "v_fma_f32 v10, v10, v7, v8", "v_fma_f32 v11, v11, v7, v8",
                      "v_fma_f32 v12, v12, v7, v8", "v_fma_f32 v13, v13, v7, v8",
                      f"v_cvt_pk_bf16_f32 v{x0}, v10, v11", f"v_cvt_pk_bf16_f32 v{x1}, v12, v13"]
            return L

        for j in range(8):
            a(f"s_waitcnt vmcnt({12 if j < 4 else (7 - j) * 4})")
            if j == 4:
                a([f"v_add_u32 v{r}, 0x10000, v{r}" for r in range(36, 40)])
            for s in range(4):
                a(f"ds_read_b128 {vr(X0 + 16*j + 4*s)}, v{36+s} offset:{16384 * (j & 3)}")
            if j < 4:
                a(xdma(j + 4))
            if j > 0:
                a(dots(j - 1))
            a("s_waitcnt lgkmcnt(0)")
            if j == 3:
                a("s_barrier")
                a(self.ts(1))
        a("s_barrier")
        a(self.ts(2))
        for m in range(4):
            a(reads(m))
        a(dots(7))
        a(f"""
v_add_f32 v40, v40, v41
v_add_f32 v42, v42, v43
v_mov_b32 v41, v40
v_mov_b32 v43, v42
v_permlane32_swap_b32 v40, v41
v_permlane32_swap_b32 v42, v43
v_add_f32 v40, v40, v41
v_add_f32 v42, v42, v43
v_mul_f32 v40, {f32(1/512)}, v40
v_mul_f32 v42, {f32(1/512)}, v42
v_fma_f32 v42, -v40, v40, v42
v_max_f32 v42, 0, v42
v_add_f32 v42, {f32(1e-5)}, v42
v_rsq_f32 v7, v42
v_mul_f32 v8, -v40, v7
""".replace("v_mul_f32 v8, -v40, v7", "v_mul_f32_e64 v8, -v40, v7"))
        a(norm(0))

        fill = [[] for _ in range(N)]
        for kk in range(31):
            L = norm(kk + 1)
            fill[3 * kk] += L[:7]
            fill[3 * kk + 1] += L[7:14]
            fill[3 * kk + 2] += L[14:]
        ep = []
        for t in range(2):
            A = ACC1[t]
            ep += [f"v_mul_f32 v{A+i}, s72, v{A+i}" for i in range(16)]
            ep += [f"v_cvt_pk_bf16_f32 v{A+i}, v{A+2*i}, v{A+2*i+1}" for i in range(8)]
            ep += [f"buffer_store_dwordx4 {vr(A)}, v1, {sr(sWS)}, s{68+2*t} offen sc1",
                   f"buffer_store_dwordx4 {vr(A+4)}, v1, {sr(sWS)}, s{69+2*t} offen sc1"]
        A = ACC1[2]
        ep += [f"v_cvt_pk_bf16_f32 v{A+i}, v{A+2*i}, v{A+2*i+1}" for i in range(8)]
        ep += [f"buffer_store_dwordx4 {vr(A)}, v9, {sr(sWS)}, s73 offen sc1",
               f"buffer_store_dwordx4 {vr(A+4)}, v9, {sr(sWS)}, s73 offen offset:512 sc1"]
        per = 5
        for n in range(0, len(ep), per):
            fill[96 + n // per] += ep[n:n + per]

        def ep2(t):
            A = 32 + 16 * t
            L = []
            for i in range(8):
                L.append(f"v_max_f32 v{A+i}, 0, v{A+i}")
            for i in range(8):
                L.append(f"v_mul_f32 v{A+i}, v{A+i}, v{A+8+i}")
            L += [f"v_cvt_pk_bf16_f32 v{A+i}, v{A+2*i}, v{A+2*i+1}" for i in range(4)]
            L.append(f"buffer_store_dwordx4 {vr(A)}, v1, {sr(sWS)}, s{74 + (t >> 2)} offen offset:{(t & 3) * 1024} sc1")
            return L

        base7 = N - 24
        tail = []
        for t in range(6):
            L = ep2(t)
            m0 = base7 + 4 * t + 6
            for n in range(4):
                part = L[n * 5:(n + 1) * 5] if n < 3 else L[15:]
                if m0 + n < N:
                    fill[m0 + n] += part
                else:
                    tail += part

        for m in range(N):
            d = mf[m]
            s = 16 + 4 * (m % 4)
            x = X0 + 4 * d["kk"]
            a(f"s_waitcnt lgkmcnt({2 * min(3, N - 1 - m)})")
            A, B = (vr(x), vr(s)) if d["swap"] else (vr(s), vr(x))
            C = "0" if d["first"] else vr(d["acc"], 16)
            a(f"v_mfma_f32_32x32x16_bf16 {vr(d['acc'], 16)}, {A}, {B}, {C}")
            if m == 95:
                a(self.ts(3))
            R = reads(m + 4) if m + 4 < N else []
            if m < 96 and m % 3 == 2:
                a(fill[m])
                a(R)
            else:
                a(R)
                a(fill[m])
        a(tail)
        a(self.ts(4))

    def p1_helper(self):
        a = self.a
        a(f"""
s_sub_u32 s63, s{sW}, 4
s_mul_i32 s64, s63, {16 * 3072}
s_lshl_b32 s62, s{sCG}, 7
s_add_u32 s62, s62, s64
v_lshrrev_b32 v2, 3, v0
v_mul_u32_u24 v3, 3072, v2
v_and_b32 v4, 7, v0
v_bfe_u32 v5, v0, 4, 1
v_lshlrev_b32 v5, 2, v5
v_xor_b32 v5, v5, v4
v_lshl_add_u32 v3, v5, 4, v3
v_add_u32 v32, s62, v3
v_add_u32 v33, {8 * 3072 - 1024}, v32
s_lshl_b32 s62, s{sCG}, 6
s_add_u32 s62, s62, s64
v_lshrrev_b32 v3, 2, v0
v_mul_u32_u24 v3, 3072, v3
v_and_b32 v5, 3, v0
v_lshl_add_u32 v3, v5, 4, v3
v_add_u32 v34, s62, v3
s_mul_i32 s62, s{sCG}, 3
s_min_u32 s62, s62, 40
s_lshl_b32 s62, s62, 6
s_mul_i32 s64, s63, {16 * 2752}
s_add_u32 s62, s62, s64
""")
        for n in range(3):
            a(f"""
v_add_u32 v3, {64 * n}, v0
v_mul_u32_u24 v5, 171, v3
v_lshrrev_b32 v5, 11, v5
v_mul_u32_u24 v6, 12, v5
v_sub_u32 v6, v3, v6
v_mul_u32_u24 v5, 2752, v5
v_add_u32 v5, s62, v5
v_subrev_u32 v5, {1024 * n}, v5
v_lshl_add_u32 v{36+n}, v6, 4, v5
v_xor_b32 v6, 2, v6
v_lshl_add_u32 v{40+n}, v6, 4, v5
""")
        a(f"""
v_lshlrev_b32 v44, 10, v2
v_lshl_add_u32 v44, v4, 4, v44
v_add_u32 v45, 7168, v44
v_lshrrev_b32 v3, 5, v0
v_bfe_u32 v5, v0, 2, 2
v_lshl_add_u32 v3, v3, 2, v5
v_lshlrev_b32 v3, 7, v3
v_bfe_u32 v5, v0, 4, 1
v_lshl_add_u32 v3, v5, 5, v3
v_and_b32 v5, 3, v0
v_lshl_add_u32 v3, v5, 3, v3
s_lshl_b32 s70, s63, 11
s_add_u32 s70, s70, 98304
v_add_u32 v46, s70, v3
v_mov_b32 v48, -1
v_mov_b32 v49, -1
v_mov_b32 v50, -1
v_mov_b32 v51, -1
s_mul_i32 s65, s63, 3072
s_mul_i32 s66, s63, 6144
s_waitcnt lgkmcnt(0)
""")
        ub = [114688, 139264, 0, 24576, 49152, 73728, 114688, 139264]

        def item(k):
            L = []
            if k < 8:
                L += [f"s_add_u32 s67, s{sROT}, {k}", "s_and_b32 s67, s67, 7", f"s_add_u32 m0, s65, {12288 * k}",
                      "s_mul_i32 s67, s67, 196608"]
                for n in range(3):
                    L.append(f"buffer_load_dwordx4 v{32+n}, {sr(sWQ)}, s67 offen offset:{1024*n} lds")
            else:
                u, up = (k - 8) >> 1, (k - 8) & 1
                L += [f"s_add_u32 s67, s{sROT}, {u}", "s_and_b32 s67, s67, 7", f"s_add_u32 m0, s66, {ub[u] + 3072 * up}",
                      "s_mul_i32 s67, s67, 176128"]
                for n in range(3):
                    L.append(f"buffer_load_dwordx4 v{(40 if up else 36)+n}, {sr(sWU if up else sWG)}, s67 offen offset:{1024*n} lds")
            return L

        lim = self.o.get("lim", [5, 7, 9, 10, 11, 13, 14, 15, 17, 19, 21, 23, 23, 23, 23, 23])
        free = [11, 11, 11, 13, 13, 15, 15, 17, 17, 19, 21, 23, 23, 23, 23, 23]
        assert all(x <= y for x, y in zip(lim, free))
        a("s_barrier")
        issued = self.o.get("lim0", 3)
        for k in range(issued + 1):
            a(item(k))
        extra = 0
        for b in range(16):
            needed = b if b < 8 else 8 + 2 * (b - 8) + 1
            a(f"s_waitcnt vmcnt({3 * (issued - needed) + extra})")
            a("s_barrier")
            while issued < lim[b]:
                issued += 1
                a(item(issued))
            if b == 11:
                self.p1_side_issue()
                extra = 4
        self.p1_side_finish()

    def p1_side_issue(self):
        a = self.a
        a(f"""
s_lshr_b32 s62, s2, 1
s_min_u32 s62, s62, 117
s_and_b32 s64, s2, 1
s_sub_u32 s67, s62, 86
s_cmp_lt_u32 s62, 86
s_cselect_b32 s{sWR}, s4, s{sWR}
s_cselect_b32 s{sWR+1}, s5, s{sWR+1}
s_cselect_b32 s{sWR+2}, 1409024, s{sWR+2}
s_cselect_b32 s67, s62, s67
s_lshl_b32 s67, s67, 14
s_lshl2_add_u32 s64, s64, s63
s_lshl_b32 s68, s64, 7
s_add_u32 s67, s67, s68
s_mov_b32 m0, s70
s_mul_i32 s64, s64, 236
buffer_load_dwordx4 v44, {sr(sWR)}, s67 offen lds
buffer_load_dwordx4 v45, {sr(sWR)}, s67 offen offset:1024 lds
s_add_u32 s64, s64, s62
s_lshl_b32 s64, s64, 10
s_add_u32 s71, s64, {WF}
s_add_u32 s72, s71, {118 * 1024}
s_lshl3_add_u32 s62, s{sQB}, s63
s_add_u32 s62, s62, s63
s_lshl_b32 s62, s62, 5
s_add_u32 s62, s62, s{sHEAD}
s_lshl_b32 s62, s62, 10
s_add_u32 s62, s62, {OF}
s_add_u32 s64, s62, 32768
buffer_store_dwordx4 v[48:51], v1, {sr(sWS)}, s62 offen sc1
buffer_store_dwordx4 v[48:51], v1, {sr(sWS)}, s64 offen sc1
""")

    def p1_side_finish(self):
        a = self.a
        a(f"""
s_waitcnt vmcnt(2)
ds_read_b64_tr_b16 v[52:53], v46
ds_read_b64_tr_b16 v[54:55], v46 offset:1024
ds_read_b64_tr_b16 v[56:57], v46 offset:64
ds_read_b64_tr_b16 v[58:59], v46 offset:1088
s_waitcnt lgkmcnt(0)
buffer_store_dwordx4 v[52:55], v1, {sr(sWS)}, s71 offen sc1
buffer_store_dwordx4 v[56:59], v1, {sr(sWS)}, s72 offen sc1
""")

    def p1_helper_fused(self, b):
        pass

    S0, S1, CC, OO, ACC, SLOT, WO = 32, 48, 64, 80, 96, 128, 176

    def p2_setup(self):
        a = self.a
        a(f"""
v_and_b32 v29, 31, v0
v_lshrrev_b32 v30, 5, v0
v_and_b32 v2, 0x33, v0
v_bfe_u32 v6, v0, 2, 1
v_lshl_add_u32 v2, v6, 3, v2
v_bfe_u32 v6, v0, 3, 1
v_lshl_add_u32 v2, v6, 2, v2
v_lshlrev_b32 v2, 4, v2
v_cmp_gt_u32 vcc, 16, v29
v_cndmask_b32 v6, 0, v29, vcc
v_lshl_add_u32 v6, v30, 4, v6
v_lshlrev_b32 v6, 4, v6
v_add_u32 v3, 1024, v6
v_add_u32 v4, 1536, v6
v_add_u32 v6, 4, v29
v_and_b32 v6, 24, v6
v_cmp_le_u32 s[62:63], 16, v29
v_cmp_ne_u32 vcc, 24, v6
s_and_b64 vcc, vcc, s[62:63]
v_mov_b32 v7, 2048
v_cndmask_b32 v3, v3, v7, vcc
v_cndmask_b32 v4, v4, v7, vcc
v_mov_b32 v5, 0xdddddddd
""")
        for r in list(range(self.OO, self.OO + 16)) + list(range(self.S1 + 8, self.S1 + 16)) + list(range(20, 24)):
            a(f"v_mov_b32 v{r}, 0")
        a(f"""
s_and_b32 s62, s{sW}, 1
s_lshr_b32 s63, s{sW}, 1
s_mul_i32 s64, s63, 22
s_add_u32 s65, s63, 1
s_lshr_b32 s65, s65, 2
s_sub_u32 s64, s64, s65
s_lshl1_add_u32 s62, s{sNB}, s62
s_mul_i32 s62, s62, 236
s_add_u32 s62, s62, s64
s_lshl_b32 s62, s62, 10
s_add_u32 s10, s62, {WF}
s_add_u32 s11, s10, {118 * 1024}
s_mul_i32 s62, s{sTG}, 86
s_add_u32 s62, s62, s64
s_lshl_b32 s62, s62, 10
s_add_u32 s12, s62, {HF}
s_and_b32 s62, s{sW}, 3
s_lshl2_add_u32 s62, s{sNB}, s62
s_mul_i32 s62, s62, 118
s_lshr_b32 s63, s{sW}, 2
s_lshl4_add_u32 s62, s63, s62
s_add_u32 s62, s62, 86
s_lshl_b32 s62, s62, 10
s_add_u32 s13, s62, {WF}
s_lshl3_add_u32 s62, s{sQB}, s{sW}
s_lshl_b32 s62, s62, 5
s_add_u32 s62, s62, s{sHEAD}
s_lshl_b32 s62, s62, 10
s_add_u32 s14, s62, {OF}
s_lshl3_add_u32 s62, s{sTG}, s{sW}
s_lshl_b32 s62, s62, 12
s_add_u32 s15, s62, {OF}
s_lshl3_add_u32 s62, s{sTG}, s{sW}
s_lshl_b32 s62, s62, 12
s_lshl_b32 s63, s{sNB}, 8
s_add_u32 s16, s62, s63
v_lshrrev_b32 v6, 4, v0
v_and_b32 v7, 15, v0
v_lshlrev_b32 v28, 10, v6
v_lshl_add_u32 v28, v7, 4, v28
""")

    def p2_kv_issue(self, groups):
        a = self.a
        for n in groups:
            a(f"s_add_u32 m0, s18, {8 * n * KVP}")
            a(f"s_add_u32 s62, s17, {8 * n * 3072}")
            a(f"buffer_load_dwordx4 v1, {sr(sWS)}, s62 offen sc1 lds")
            a(f"buffer_load_dwordx4 v1, {sr(sWS)}, s62 offen offset:1024 sc1 lds")

    def p2_prologue_two(self):
        a = self.a
        a(f"""
s_mul_i32 s19, s{sHEAD}, {HEAD_STRIDE}
s_mul_i32 s62, s{sW}, 3072
s_add_u32 s17, s19, s62
s_mul_i32 s18, s{sW}, {KVP}
s_mul_i32 s62, s{sQB}, {8 * 3072}
s_add_u32 s19, s17, s62
s_waitcnt lgkmcnt(0)
buffer_load_dwordx4 v[8:11], v1, {sr(sWS)}, s19 offen offset:2048 sc1
""")
        self.p2_kv_issue(range(8))
        a(f"""
v_mul_u32_u24 v6, {KVP}, v0
v_mov_b32 v12, 0x3f803f80
v_mov_b32 v13, 0x3f803f80
v_mov_b32 v14, 0x3f803f80
v_mov_b32 v15, 0x3f803f80
ds_write_b128 v6, v[12:15] offset:2048
""")

    def tile(self, u, extra=None):
        extra = extra or {}
        S = self.S0 if u % 2 == 0 else self.S1
        Sn = self.S1 if u % 2 == 0 else self.S0
        E = lambda i: f"v_exp_f32 v{S+i}, v{S+i}"
        O = vr(self.OO, 16)
        L = [E(0), E(1), "s_waitcnt lgkmcnt(0)",
             f"v_smfmac_f32_32x32x32_bf16 {O}, v[20:23], {vr(Sn+8, 8)}, v5",
             f"ds_read_b128 v[20:23], v4 offset:{u * KVP}"]
        L += extra.get("a", [])
        L += [E(2), E(3), E(4),
              f"v_mfma_f32_32x32x16_bf16 {vr(Sn, 16)}, v[12:15], v[8:11], {vr(self.CC, 16)}",
              f"ds_read_b128 v[12:15], v2 offset:{(u + 2) * KVP}"]
        L += [E(i) for i in range(5, 10)]
        L += [f"v_smfmac_f32_32x32x32_bf16 {O}, v[16:19], {vr(S, 8)}, v5",
              f"ds_read_b128 v[16:19], v3 offset:{(u + 1) * KVP}"]
        L += extra.get("b", [])
        L += [E(10), E(11), E(12)]
        L += extra.get("c", [])
        L += [E(13), E(14), E(15)]
        return L

    def adv(self):
        return [f"v_add_u32 v{r}, {8 * KVP}, v{r}" for r in (2, 3, 4)]

    def p3_load(self, kind, q):
        s = self.SLOT + 12 * q
        reg, so = {"w0": (s, 10), "w1": (s + 4, 11), "h": (s + 8, 12)}[kind]
        return f"buffer_load_dwordx4 {vr(reg)}, v1, {sr(sWS)}, s{so} offen offset:{1024 * q} sc1"

    def p3_mfma(self, q, n, first=False):
        s = self.SLOT + 12 * q
        acc = vr(self.ACC + 16 * n, 16)
        return f"v_mfma_f32_32x32x16_bf16 {acc}, {vr(s + 4 * n)}, {vr(s + 8)}, {'0' if first else acc}"

    def p2_main(self, first_wait):
        a = self.a
        S0, CC, OO = self.S0, self.CC, self.OO
        a(f"s_waitcnt vmcnt({first_wait}) lgkmcnt(0)\ns_barrier")
        a(self.ts(5))
        a(f"""
ds_read_b128 v[24:27], v2
ds_read_b128 v[12:15], v2 offset:{KVP}
ds_read_b128 v[16:19], v3
s_waitcnt lgkmcnt(2)
v_mfma_f32_32x32x16_bf16 {vr(S0, 16)}, v[24:27], v[8:11], 0
""")
        for r in range(self.ACC, self.ACC + 32):
            a(f"v_mov_b32 v{r}, 0")
        a(f"v_max3_f32 v6, v{S0}, v{S0+1}, v{S0+2}")
        for i in range(3, 15, 2):
            a(f"v_max3_f32 v6, v6, v{S0+i}, v{S0+i+1}")
        a(f"""
v_max_f32 v6, v6, v{S0+15}
v_mov_b32 v7, v6
v_permlane32_swap_b32 v6, v7
v_max_f32 v6, v6, v7
""")
        if self.o["force_fb"]:
            a("v_add_f32 v6, 0xc3480000, v6")
        for i in range(16):
            a(f"v_sub_f32 v{CC+i}, 0, v6")
        for i in range(16):
            a(f"v_sub_f32 v{S0+i}, v{S0+i}, v6")
        a("s_mov_b32 s20, 0")
        body = ["L_attA:"]
        for u in range(8):
            ex = {}
            if u == 5:
                ex["b"] = ["s_cmp_lg_u32 s20, 0", "s_cbranch_scc1 L_attA_nb", "s_waitcnt vmcnt(0)", "s_barrier", "L_attA_nb:"]
            body += self.tile(u, ex)
        body += self.adv() + ["s_add_u32 s20, s20, 1", "s_cmp_lt_u32 s20, 2", "s_cbranch_scc1 L_attA"]
        assert check_loop(body) == 0
        a(body)
        a(self.ts(6))
        for u in range(8):
            if u < 4:
                wl = [f"buffer_load_dwordx4 {vr(self.WO + 16*u + 4*f)}, v1, {sr(sWS)}, s13 offen offset:{1024 * f} sc1" for f in range(4)]
                ex = {"a": wl[:2], "b": wl[2:] + ["s_add_u32 s13, s13, 4096"]}
                if u == 0:
                    ex["c"] = [f"buffer_load_dwordx4 v[24:27], v28, {sr(sX)}, s16 offen"]
            else:
                ex = {"a": [self.p3_load("w0", u - 4)], "b": [self.p3_load("w1", u - 4), self.p3_load("h", u - 4)]}
            a(self.tile(u, ex))
        a(self.adv())
        a("s_mov_b32 s20, 0")
        body = ["L_attB:"] + [f"s_add_u32 s{r}, s{r}, 4096" for r in (10, 11, 12)]
        for u in range(8):
            q = u >> 1
            if u & 1 == 0:
                ex = {"c": ["s_waitcnt vmcnt(9)", self.p3_mfma(q, 0), self.p3_load("w0", q)]}
            else:
                ex = {"c": [self.p3_mfma(q, 1), self.p3_load("w1", q), self.p3_load("h", q)]}
            body += self.tile(u, ex)
        body += self.adv() + ["s_add_u32 s20, s20, 1", "s_cmp_lt_u32 s20, 5", "s_cbranch_scc1 L_attB"]
        assert check_loop(body) == 0
        a(body)
        a(f"""
s_waitcnt lgkmcnt(0)
v_smfmac_f32_32x32x32_bf16 {vr(OO, 16)}, v[20:23], {vr(self.S1 + 8, 8)}, v5
""")
        a(self.ts(7))
        a(f"""
s_waitcnt vmcnt(6)
{self.p3_mfma(0, 0)}
{self.p3_mfma(0, 1)}
v_cmp_gt_u32 s[22:23], 32, v0
s_mov_b32 s21, 0xfffffffe
s_mov_b32 s62, 0x5f800000
s_nop 6
v_cndmask_b32 v6, v{OO+12}, v{OO+8}, s[22:23]
v_fma_f32 v7, v{OO}, 0, v6
""")
        for i in range(1, 8):
            a(f"v_fma_f32 v7, v{OO+i}, 0, v7")
        a(f"""
v_cmp_ngt_f32 vcc, s62, v7
s_cbranch_vccnz L_fallback
L_fb_done:
v_rcp_f32 v6, v6
""")
        for i in range(8):
            a(f"v_mul_f32 v{OO+i}, v{OO+i}, v6")
        for i in range(4):
            a(f"v_cvt_pk_bf16_f32 v{OO+i}, v{OO+2*i}, v{OO+2*i+1}")
        for i in range(4):
            a(f"v_min_u32 v{OO+i}, s21, v{OO+i}")
        a(f"buffer_store_dwordx4 {vr(OO)}, v1, {sr(sWS)}, s14 offen sc1")

    def fallback(self):
        a = self.a
        S0, CC, OO = self.S0, self.CC, self.OO
        a("L_fallback:")
        a([f"v_subrev_u32 v{r}, {64 * KVP}, v{r}" for r in (2, 3, 4)])
        a(f"v_mov_b32 v6, 0xff800000\nv_mov_b32 v7, v2\ns_mov_b32 s20, 0")
        body = ["L_fbA:", "ds_read_b128 v[12:15], v7", f"v_add_u32 v7, {KVP}, v7", "s_waitcnt lgkmcnt(0)",
                f"v_mfma_f32_32x32x16_bf16 {vr(S0, 16)}, v[12:15], v[8:11], 0", "s_nop 11"]
        body += [f"v_max3_f32 v6, v6, v{S0+i}, v{S0+i+1}" for i in range(0, 16, 2)]
        body += ["s_add_u32 s20, s20, 1", "s_cmp_lt_u32 s20, 64", "s_cbranch_scc1 L_fbA"]
        assert check_loop(body) == 0
        a(body)
        a("v_mov_b32 v7, v6\ns_nop 1\nv_permlane32_swap_b32 v6, v7\nv_max_f32 v6, v6, v7")
        for i in range(16):
            a(f"v_sub_f32 v{CC+i}, 0, v6")
        for i in range(16):
            a(f"v_mov_b32 v{OO+i}, 0")
        a("s_mov_b32 s20, 0")
        body = ["L_fbB:", "ds_read_b128 v[12:15], v2", "ds_read_b128 v[16:19], v3", "ds_read_b128 v[20:23], v4"]
        body += [f"v_add_u32 v{r}, {KVP}, v{r}" for r in (2, 3, 4)]
        body += ["s_waitcnt lgkmcnt(0)", f"v_mfma_f32_32x32x16_bf16 {vr(S0, 16)}, v[12:15], v[8:11], {vr(CC, 16)}", "s_nop 11"]
        body += [f"v_exp_f32 v{S0+i}, v{S0+i}" for i in range(16)]
        body += ["s_nop 1", f"v_smfmac_f32_32x32x32_bf16 {vr(OO, 16)}, v[16:19], {vr(S0, 8)}, v5",
                 f"v_smfmac_f32_32x32x32_bf16 {vr(OO, 16)}, v[20:23], {vr(S0 + 8, 8)}, v5",
                 "s_add_u32 s20, s20, 1", "s_cmp_lt_u32 s20, 64", "s_cbranch_scc1 L_fbB"]
        assert check_loop(body) == 0
        a(body)
        a(f"s_nop 11\nv_cndmask_b32 v6, v{OO+12}, v{OO+8}, s[22:23]\ns_branch L_fb_done")

    def p3_tail(self):
        a = self.a
        ACC = self.ACC
        PB = 32 * 528
        OST = 73728
        FB = 106496
        a(f"""
s_cmp_ge_u32 s{sW}, 4
s_cbranch_scc1 L_no21
{self.p3_mfma(1, 0)}
{self.p3_mfma(1, 1)}
L_no21:
v_and_b32 v10, 31, v0
v_lshrrev_b32 v11, 5, v0
v_mul_u32_u24 v2, 528, v10
v_lshl_add_u32 v2, v11, 8, v2
s_and_b32 s62, s{sW}, 3
s_lshl_b32 s62, s62, 6
s_lshr_b32 s63, s{sW}, 2
s_mul_i32 s64, s63, {PB}
s_add_u32 s62, s62, s64
s_add_u32 s62, s62, {FB}
v_add_u32 v4, s62, v2
s_lshl_b32 s63, s63, 14
s_add_u32 s63, s63, {OST}
v_add_u32 v29, s63, v1
s_and_b32 s62, s{sW}, 1
s_lshl_b32 s62, s62, 7
s_lshr_b32 s63, s{sW}, 1
s_mul_i32 s63, s63, {PB}
s_add_u32 s62, s62, s63
v_add_u32 v2, s62, v2
v_lshrrev_b32 v6, 4, v0
v_and_b32 v7, 15, v0
v_mul_u32_u24 v3, 528, v6
v_lshl_add_u32 v3, v7, 4, v3
s_mul_i32 s62, s{sW}, {4 * 528}
v_add_u32 v3, s62, v3
s_lshl_b32 s62, s{sW}, 12
s_add_u32 s62, s62, {OST}
v_add_u32 v30, s62, v1
s_barrier
""")
        for n in range(2):
            for g in range(4):
                a(f"ds_write_b128 v2, {vr(ACC + 16*n + 4*g)} offset:{(4*n + g) * 16}")
        a("s_waitcnt lgkmcnt(0)\ns_barrier")
        for kq in range(4):
            for h in range(2):
                a(f"ds_read_b128 {vr(32 + 8*kq + 4*h)}, v3 offset:{kq * PB + h * 256}")
        for i in range(4):
            a(f"v_lshlrev_b32 v{64+2*i}, 16, v{24+i}")
            a(f"v_and_b32 v{65+2*i}, 0xffff0000, v{24+i}")
        for kq in range(4):
            a(f"s_waitcnt lgkmcnt({6 - 2*kq})")
            for i in range(8):
                a(f"v_add_f32 v{64+i}, v{64+i}, v{32+8*kq+i}")
        a(self.ts(8))
        a("s_waitcnt vmcnt(0)\ns_mov_b32 s20, 0")
        a("L_opoll:")
        for f in range(4):
            a(f"buffer_load_dwordx4 {vr(32 + 4*f)}, v1, {sr(sWS)}, s15 offen offset:{1024*f} sc1")
        a("s_add_u32 s20, s20, 1\ns_waitcnt vmcnt(3)")
        a("v_max3_u32 v6, v32, v33, v34\ns_waitcnt vmcnt(2)")
        a("v_max3_u32 v6, v6, v35, v36\nv_max3_u32 v6, v6, v37, v38\ns_waitcnt vmcnt(1)")
        a("v_max3_u32 v6, v6, v39, v40\nv_max3_u32 v6, v6, v41, v42\ns_waitcnt vmcnt(0)")
        a("v_max3_u32 v6, v6, v43, v44\nv_max3_u32 v6, v6, v45, v46\nv_max_u32 v6, v6, v47")
        a(f"""
v_cmp_eq_u32 vcc, -1, v6
s_cbranch_vccz L_oready
s_cmp_lt_u32 s20, {SPIN}
s_cbranch_scc1 L_opoll
L_oready:
""")
        for f in range(4):
            a(f"ds_write_b128 v30, {vr(32 + 4*f)} offset:{1024*f}")
        a("s_waitcnt lgkmcnt(0)\ns_barrier")
        a(self.ts(9))
        for f in range(16):
            a(f"ds_read_b128 {vr(112 + 4*f)}, v29 offset:{1024*f}")
        for f in range(16):
            a(f"s_waitcnt lgkmcnt({15 - f})")
            a(f"v_mfma_f32_32x32x16_bf16 {vr(ACC, 16)}, {vr(self.WO + 4*f)}, {vr(112 + 4*f)}, {'0' if f == 0 else vr(ACC, 16)}")
        a(f"v_add_u32 v3, {FB}, v3")
        for g in range(4):
            a(f"ds_write_b128 v4, {vr(ACC + 4*g)} offset:{16*g}")
        a("s_waitcnt lgkmcnt(0)\ns_barrier")
        for kh in range(2):
            for h in range(2):
                a(f"ds_read_b128 {vr(32 + 8*kh + 4*h)}, v3 offset:{kh * PB + h * 256}")
        for kh in range(2):
            a(f"s_waitcnt lgkmcnt({2 - 2*kh})")
            for i in range(8):
                a(f"v_add_f32 v{64+i}, v{64+i}, v{32+8*kh+i}")
        for i in range(4):
            a(f"v_cvt_pk_bf16_f32 v{64+i}, v{64+2*i}, v{65+2*i}")
        a(f"buffer_store_dwordx4 v[64:67], v28, {sr(sOUT)}, s16 offen")
        a(self.ts(10))
        a("s_waitcnt vmcnt(0)")
        a(self.ts(11))

    def kernel(self, name, emit):
        self.a = Asm()
        emit()
        lines, npad = pad_hazards(self.a.L, verbose=self.o.get("verbose", False))
        body = "\n".join(l if l.endswith(":") else "  " + l for l in lines)
        text = f".globl {name}\n.p2align 8\n.type {name},@function\n{name}:\n{body}\n"
        desc = f""".p2align 6
.amdhsa_kernel {name}
  .amdhsa_next_free_vgpr 256
  .amdhsa_next_free_sgpr 102
  .amdhsa_accum_offset 256
  .amdhsa_group_segment_fixed_size 0
  .amdhsa_kernarg_size 80
  .amdhsa_user_sgpr_count 2
  .amdhsa_user_sgpr_kernarg_segment_ptr 1
  .amdhsa_system_sgpr_workgroup_id_x 1
  .amdhsa_float_denorm_mode_32 3
.end_amdhsa_kernel
"""
        return text, desc

    def k1(self):
        a = self.a
        self.prologue("L_end1")
        a(f"s_cmp_ge_u32 s{sW}, 4\ns_cbranch_scc1 L_helper")
        self.p1_compute()
        a("s_branch L_p1_done\nL_helper:")
        self.p1_helper()
        a("L_p1_done:\ns_waitcnt vmcnt(0)")
        self.ts_dump(0)
        a("L_end1:\ns_endpgm")

    def k2(self):
        a = self.a
        self.prologue("L_end2")
        self.p2_prologue_two()
        self.p2_setup()
        self.p2_main(14)
        self.p3_tail()
        self.ts_dump(1)
        a("L_end2:\ns_endpgm")
        self.fallback()

    def build(self):
        head = open(f"cdna_kernels/{NAME}.s.ref").read().split("; Override launch")[0]
        if self.o["mode"] == "two":
            ks = [("p1_kernel", self.k1), (NAME + "_kernel", self.k2)]
            launch = "".join(f"; @launch kernel={n} grid=(256,1,1) block=(512,1,1) lds={LDS_BYTES}\n" for n, _ in ks)
        else:
            ks = [(NAME + "_kernel", self.k_fused)]
            launch = f"; @launch grid=(256,1,1) block=(512,1,1) lds={LDS_BYTES}\n"
        parts = [self.kernel(n, f) for n, f in ks]
        return (head + launch + '.amdgcn_target "amdgcn-amd-amdhsa--gfx950"\n.text\n' + "".join(p[0] for p in parts)
                + '.section .rodata,"a"\n' + "".join(p[1] for p in parts))


if __name__ == "__main__":
    opt = {}
    out = f"cdna_kernels/{NAME}.s"
    for arg in sys.argv[1:]:
        k, v = arg.split("=", 1)
        if k == "out":
            out = v
        else:
            opt[k] = eval(v) if k != "mode" else v
    open(out, "w").write(Gen(**opt).build())
```
